```python
import torch

def _softmax(x, axis=-1):
    return torch.softmax(x, dim=axis)
def _gelu(x):
    return torch.nn.functional.gelu(x, approximate="tanh")
def _silu(x):
    return torch.nn.functional.silu(x)
def _sigmoid(x):
    return torch.sigmoid(x)
def _layernorm(x, axis=-1, eps=1e-5):
    m = x.mean(dim=axis, keepdim=True)
    v = x.var(dim=axis, keepdim=True, unbiased=False)
    return (x - m) / torch.sqrt(v + eps)
def _scatter_add(tgt, idx, src, axis=0):
    return tgt.clone().index_add_(axis, idx, src)
def _segment_sum(src, seg, n):
    out = torch.zeros((n,) + src.shape[1:], dtype=src.dtype)
    return out.index_add_(0, seg, src)
def _pad(x, pw):
    flat = tuple(v for pair in reversed(pw) for v in pair)
    return torch.nn.functional.pad(x, flat)

kernel_name = 'gated_mix__spectral_fnet__softmax_full_mha__prompt'

def setup_inputs():

    _w = (lambda a: (lambda t: t.to(torch.bfloat16) if t.is_floating_point() else t)(torch.as_tensor(a)))
    def _A_setup():
        B, S, D = 1, 2048, 1024
        ns = torch.arange(S)[:, None] * torch.arange(S)[None, :]
        nd = torch.arange(D)[:, None] * torch.arange(D)[None, :]
        Ws_re = torch.cos(-2.0 * torch.pi * ns / S).to(float)
        Ws_im = torch.sin(-2.0 * torch.pi * ns / S).to(float)
        Wd_re = torch.cos(-2.0 * torch.pi * nd / D).to(float)
        Wd_im = torch.sin(-2.0 * torch.pi * nd / D).to(float)
        return {
            "x": _w((lambda *s: torch.randn(*s, dtype=torch.bfloat16) * 0.05)(B, S, D)),
            "dft_seq_re": _w(Ws_re),
            "dft_seq_im": _w(Ws_im),
            "dft_hid_re": _w(Wd_re),
            "dft_hid_im": _w(Wd_im),
        }
    _A_in = _A_setup()

    def _B_setup():
        B, S, D = 1, 2048, 1024
        return {
            "x": _w((lambda *s: torch.randn(*s, dtype=torch.bfloat16) * 0.05)(B, S, D)),
            "wqkv": _w((lambda *s: torch.randn(*s, dtype=torch.bfloat16) * 1.6)(D, 3 * D)),
            "wo": _w((lambda *s: torch.randn(*s, dtype=torch.bfloat16) * 0.2)(D, D)),
        }
    _B_in = _B_setup()

    return {
        "A_x": _A_in["x"],
        "A_dft_seq_re": _A_in["dft_seq_re"],
        "A_dft_seq_im": _A_in["dft_seq_im"],
        "A_dft_hid_re": _A_in["dft_hid_re"],
        "A_dft_hid_im": _A_in["dft_hid_im"],
        "B_x": _B_in["x"],
        "B_wqkv": _B_in["wqkv"],
        "B_wo": _B_in["wo"],
        "gate_w": _w((lambda *s: torch.randn(*s, dtype=torch.bfloat16) * 0.05)(1024) * 16.0),
    }

def reference(A_x, A_dft_seq_re, A_dft_seq_im, A_dft_hid_re, A_dft_hid_im, B_x, B_wqkv, B_wo, gate_w):
    def _A_ref(x, dft_seq_re, dft_seq_im, dft_hid_re, dft_hid_im):
        a = torch.einsum("bsd,ed->bse", x, dft_hid_re)
        b = torch.einsum("bsd,ed->bse", x, dft_hid_im)
        y = torch.einsum("ts,bse->bte", dft_seq_re, a) - torch.einsum("ts,bse->bte", dft_seq_im, b)
        return y

    def _B_ref(x, wqkv, wo):
        B, S, D = x.shape
        H = 32; Dh = D // H
        qkv = (lambda x, *d: x.permute(*d))((x @ wqkv).reshape(B, S, 3, H, Dh), 2, 0, 3, 1, 4)
        q, k, v = qkv[0], qkv[1], qkv[2]
        scale = Dh ** -0.5
        scores = torch.einsum("bhqd,bhkd->bhqk", q, k) * scale
        p = _softmax(scores, axis=-1)
        o = torch.einsum("bhqk,bhkd->bhqd", p, v)
        return (lambda x, *d: x.permute(*d))(o, 0, 2, 1, 3).reshape(B, S, D) @ wo

    x = A_x
    g = _sigmoid((x * gate_w).sum(-1, keepdims=True))
    a = _A_ref(x, A_dft_seq_re, A_dft_seq_im, A_dft_hid_re, A_dft_hid_im)
    b = _B_ref(x, B_wqkv, B_wo)
    return g * a + (1 - g) * b
```

```python
class Asm:
    def __init__(self):
        self.lines = []

    def __call__(self, s=""):
        for l in s.split("\n"):
            self.lines.append("    " + l.strip() if l.strip() and not l.strip().endswith(":") else l.strip())

    def label(self, name):
        self.lines.append(name + ":")

    def comment(self, s):
        self.lines.append("    ; " + s)

    def text(self):
        return "\n".join(self.lines) + "\n"


def vr(base, n=1):
    return f"v{base}" if n == 1 else f"v[{base}:{base+n-1}]"


def ar(base, n=1):
    return f"a{base}" if n == 1 else f"a[{base}:{base+n-1}]"


def sr(base, n=1):
    return f"s{base}" if n == 1 else f"s[{base}:{base+n-1}]"


KA_X, KA_SRE, KA_SIM, KA_HRE, KA_HIM, KA_BX, KA_WQKV, KA_WO, KA_GW, KA_OUT, KA_DBG, KA_WS = [8 * i for i in range(12)]

MB = 1 << 20
WS_ABF = 0
WS_QF = 8 * MB
WS_KVF = 12 * MB
WS_G = 20 * MB
WS_OMG = 20 * MB + 8192
WS_OP = 24 * MB
WS_Y = 28 * MB
WS_SIZE = 36 * MB


def srd(a, d, base_lo, nbytes):
    a(f"s_mov_b32 s{d}, s{base_lo}")
    a(f"s_and_b32 s{d+1}, s{base_lo+1}, 0xffff")
    a(f"s_mov_b32 s{d+2}, {nbytes}")
    a(f"s_mov_b32 s{d+3}, 0x00020000")


def kernel_header(a, name):
    a(f".globl {name}")
    a(".p2align 8")
    a(f".type {name},@function")
    a.label(name)


def kernel_desc(name, nvgpr, accum, nsgpr=102):
    return f"""
.amdhsa_kernel {name}
  .amdhsa_next_free_vgpr {nvgpr}
  .amdhsa_next_free_sgpr {nsgpr}
  .amdhsa_accum_offset {accum}
  .amdhsa_group_segment_fixed_size 0
  .amdhsa_kernarg_size 96
  .amdhsa_user_sgpr_count 2
  .amdhsa_user_sgpr_kernarg_segment_ptr 1
  .amdhsa_system_sgpr_workgroup_id_x 1
.end_amdhsa_kernel
"""


def interleave(mfmas, others, start=0, per_gap=1):
    out = []
    oi = 0
    for i, m in enumerate(mfmas):
        out.append(m)
        if i >= start:
            for _ in range(per_gap):
                if oi < len(others):
                    out.append(others[oi])
                    oi += 1
    out.extend(others[oi:])
    return out
```

```python
from common import *

NAME = "k1_proj_kernel"
STAGE = 53248
LDS_BYTES = 3 * STAGE
OFF_DR = 32768
OFF_W = 40960

QSCALE = 0.17677669529663687 * 1.4426950408889634


def f32bits(x):
    import struct
    return struct.unpack("<I", struct.pack("<f", x))[0]


def gen(a):
    kernel_header(a, NAME)
    V_LANE = 1
    V_XOFF = 8
    V_DOFF = 16
    V_WOFF = 17
    V_XA = 20
    V_DA = 24
    V_WA = 28
    V_ST = 29
    ACC = 32
    T = 192
    S_X, S_DR, S_DI, S_W, S_WS, S_GW = 8, 12, 16, 20, 24, 28
    S_WAVE, S_I, S_J = 32, 33, 34
    S_KX, S_KW = 35, 36
    S_MX, S_MO = 37, 38
    S_RD = 39
    S_CNT = 40
    S_WSLOT = 41
    S_RSLOT = 42
    S_T0, S_T1, S_T2 = 44, 45, 46

    def acc(m, c):
        return ACC + (m * 5 + c) * 16

    def frag(p, i):
        return 28 * p + 4 * i

    a("s_cmp_ge_u32 s2, 256")
    a("s_cbranch_scc1 K1_END")
    a(f"s_load_dwordx2 s[48:49], s[0:1], {KA_X}")
    a(f"s_load_dwordx4 s[52:55], s[0:1], {KA_HRE}")
    a(f"s_load_dwordx2 s[56:57], s[0:1], {KA_WQKV}")
    a(f"s_load_dwordx2 s[58:59], s[0:1], {KA_GW}")
    a(f"s_load_dwordx2 s[60:61], s[0:1], {KA_WS}")
    a(f"v_and_b32 v{V_LANE}, 63, v0")
    a("v_lshrrev_b32 v2, 6, v0")
    a("s_nop 0")
    a(f"v_readfirstlane_b32 s{S_WAVE}, v2")
    a(f"s_and_b32 s{S_T0}, s2, 7")
    a(f"s_lshr_b32 s{S_T1}, s2, 3")
    a(f"s_and_b32 s{S_I}, s{S_T0}, 1")
    a(f"s_lshl_b32 s{S_I}, s{S_I}, 2")
    a(f"s_and_b32 s{S_T2}, s{S_T1}, 3")
    a(f"s_add_u32 s{S_I}, s{S_I}, s{S_T2}")
    a(f"s_lshr_b32 s{S_J}, s{S_T0}, 1")
    a(f"s_lshl_b32 s{S_J}, s{S_J}, 3")
    a(f"s_lshr_b32 s{S_T2}, s{S_T1}, 2")
    a(f"s_add_u32 s{S_J}, s{S_J}, s{S_T2}")
    a(f"v_lshrrev_b32 v2, 3, v{V_LANE}")
    a(f"v_and_b32 v3, 7, v{V_LANE}")
    a(f"v_lshrrev_b32 v4, 4, v{V_LANE}")
    a(f"v_xor_b32 v5, v3, v4")
    a(f"v_xor_b32 v6, 4, v5")
    a(f"v_lshlrev_b32 v5, 4, v5")
    a(f"v_lshlrev_b32 v6, 4, v6")
    a(f"v_lshl_add_u32 v5, v2, 11, v5")
    a(f"v_lshl_add_u32 v6, v2, 11, v6")
    a(f"s_lshl_b32 s{S_T0}, s{S_I}, 8")
    a(f"s_lshl_b32 s{S_T1}, s{S_WAVE}, 6")
    a(f"s_add_u32 s{S_T0}, s{S_T0}, s{S_T1}")
    a(f"s_lshl_b32 s{S_T0}, s{S_T0}, 11")
    for q in range(8):
        a(f"s_add_u32 s{S_T1}, s{S_T0}, {q*8*2048}")
        a(f"v_add_u32 v{V_XOFF+q}, s{S_T1}, v{5 + (q & 1)}")
    a(f"s_lshl_b32 s{S_T0}, s{S_J}, 5")
    a(f"s_lshl_b32 s{S_T1}, s{S_WAVE}, 3")
    a(f"s_add_u32 s{S_T0}, s{S_T0}, s{S_T1}")
    a(f"s_lshl_b32 s{S_T0}, s{S_T0}, 11")
    a(f"s_and_b32 s{S_T1}, s{S_WAVE}, 1")
    a(f"s_cmp_eq_u32 s{S_T1}, 1")
    a("s_cselect_b64 vcc, -1, 0")
    a(f"v_cndmask_b32 v7, v5, v6, vcc")
    a(f"v_add_u32 v{V_DOFF}, s{S_T0}, v7")
    a(f"v_lshrrev_b32 v2, 2, v{V_LANE}")
    a(f"s_lshl_b32 s{S_T0}, s{S_WAVE}, 4")
    a(f"v_add_u32 v2, s{S_T0}, v2")
    a(f"s_movk_i32 s{S_T1}, 6144")
    a(f"v_mul_lo_u32 v2, v2, s{S_T1}")
    a(f"v_and_b32 v3, 3, v{V_LANE}")
    a(f"v_lshl_add_u32 v2, v3, 4, v2")
    a(f"s_lshl_b32 s{S_T0}, s{S_J}, 6")
    a(f"v_add_u32 v{V_WOFF}, s{S_T0}, v2")
    a(f"v_add_u32 v{V_WOFF+1}, 2048, v{V_WOFF}")
    a(f"v_add_u32 v{V_WOFF+2}, 2048, v{V_WOFF+1}")
    a(f"v_and_b32 v2, 31, v{V_LANE}")
    a(f"v_lshrrev_b32 v3, 5, v{V_LANE}")
    a(f"v_bfe_u32 v4, v{V_LANE}, 1, 3")
    a(f"s_lshl_b32 s{S_T0}, s{S_WAVE}, 13")
    for ks in range(4):
        a(f"v_add_u32 v5, {2*ks}, v3")
        a(f"v_xor_b32 v5, v5, v4")
        a(f"v_lshlrev_b32 v5, 4, v5")
        a(f"v_lshl_add_u32 v5, v2, 7, v5")
        a(f"v_add_u32 v{V_XA+ks}, s{S_T0}, v5")
        a(f"v_add_u32 v{V_DA+ks}, {OFF_DR}, v5")
    a(f"v_bfe_u32 v4, v{V_LANE}, 2, 2")
    a(f"v_lshl_add_u32 v4, v3, 3, v4")
    a(f"v_lshlrev_b32 v4, 6, v4")
    a(f"v_bfe_u32 v5, v{V_LANE}, 4, 1")
    a(f"v_lshl_add_u32 v4, v5, 5, v4")
    a(f"v_and_b32 v5, 3, v{V_LANE}")
    a(f"v_lshl_add_u32 v4, v5, 3, v4")
    a(f"v_add_u32 v{V_WA}, {OFF_W}, v4")
    a("s_waitcnt lgkmcnt(0)")
    srd(a, S_X, 48, 2048 * 1024 * 2)
    srd(a, S_DR, 52, 1024 * 1024 * 2)
    srd(a, S_DI, 54, 1024 * 1024 * 2)
    srd(a, S_W, 56, 1024 * 3072 * 2)
    srd(a, S_GW, 58, 2048)
    srd(a, S_WS, 60, WS_SIZE)
    a(f"s_lshl_b32 s{S_T0}, s2, 3")
    a(f"s_lshl_b32 s{S_T1}, s{S_WAVE}, 1")
    a(f"s_add_u32 s{S_T0}, s{S_T0}, s{S_T1}")
    a(f"s_lshl_b32 s{S_T1}, s{S_T0}, 11")
    a(f"v_lshlrev_b32 v2, 5, v{V_LANE}")
    a(f"buffer_load_dwordx4 v[{T}:{T+3}], v2, s[{S_X}:{S_X+3}], s{S_T1} offen")
    a(f"buffer_load_dwordx4 v[{T+4}:{T+7}], v2, s[{S_X}:{S_X+3}], s{S_T1} offen offset:16")
    a(f"buffer_load_dwordx4 v[{T+8}:{T+11}], v2, s[{S_X}:{S_X+3}], s{S_T1} offen offset:2048")
    a(f"buffer_load_dwordx4 v[{T+12}:{T+15}], v2, s[{S_X}:{S_X+3}], s{S_T1} offen offset:2064")
    a(f"buffer_load_dwordx4 v[{T+16}:{T+19}], v2, s[{S_GW}:{S_GW+3}], 0 offen")
    a(f"buffer_load_dwordx4 v[{T+20}:{T+23}], v2, s[{S_GW}:{S_GW+3}], 0 offen offset:16")
    a(f"s_lshl_b32 s{S_T2}, s{S_T0}, 2")

    def dma_list():
        L = []
        for q in range(8):
            L.append([f"s_add_u32 m0, s{S_MX}, {1024*q}",
                      f"buffer_load_dwordx4 v{V_XOFF+q}, s[{S_X}:{S_X+3}], s{S_KX} offen lds"])
        L.append([f"s_add_u32 m0, s{S_MO}, {OFF_DR}",
                  f"buffer_load_dwordx4 v{V_DOFF}, s[{S_DR}:{S_DR+3}], s{S_KX} offen lds"])
        L.append([f"s_add_u32 m0, s{S_MO}, {OFF_DR+4096}",
                  f"buffer_load_dwordx4 v{V_DOFF}, s[{S_DI}:{S_DI+3}], s{S_KX} offen lds"])
        for c in range(3):
            L.append([f"s_add_u32 m0, s{S_MO}, {OFF_W+4096*c}",
                      f"buffer_load_dwordx4 v{V_WOFF+c}, s[{S_W}:{S_W+3}], s{S_KW} offen lds"])
        return L

    def dma_advance():
        return [f"s_add_u32 s{S_KX}, s{S_KX}, 128",
                f"s_add_u32 s{S_KW}, s{S_KW}, {64*6144}",
                f"s_add_u32 s{S_WSLOT}, s{S_WSLOT}, {STAGE}",
                f"s_cmp_eq_u32 s{S_WSLOT}, {3*STAGE}",
                f"s_cselect_b32 s{S_WSLOT}, 0, s{S_WSLOT}",
                f"s_lshl_b32 s{S_T0}, s{S_WAVE}, 13",
                f"s_add_u32 s{S_MX}, s{S_WSLOT}, s{S_T0}",
                f"s_lshl_b32 s{S_T0}, s{S_WAVE}, 10",
                f"s_add_u32 s{S_MO}, s{S_WSLOT}, s{S_T0}"]

    a(f"s_mov_b32 s{S_KX}, 0")
    a(f"s_mov_b32 s{S_KW}, 0")
    a(f"s_mov_b32 s{S_WSLOT}, 0")
    a(f"s_lshl_b32 s{S_MX}, s{S_WAVE}, 13")
    a(f"s_lshl_b32 s{S_MO}, s{S_WAVE}, 10")
    for st in range(2):
        for pair in dma_list():
            a(pair[0])
            a("s_nop 0")
            a(pair[1])
        for s in dma_advance():
            a(s)
    for r in range(160):
        a(f"v_mov_b32 v{ACC+r}, 0")
    a("s_waitcnt vmcnt(26)")
    G = T + 24
    for i in range(8):
        a(f"v_lshlrev_b32 v{G+2*i}, 16, v{T+16+i}")
        a(f"v_and_b32 v{G+2*i+1}, 0xffff0000, v{T+16+i}")
    U = T + 40
    a(f"v_mov_b32 v{U+4}, 0")
    a(f"v_mov_b32 v{U+5}, 0")
    a(f"s_mov_b32 s{S_T0}, 0x3f803f80")
    for row in range(2):
        for i in range(8):
            x = T + 8 * row + i
            a(f"v_lshlrev_b32 v{U}, 16, v{x}")
            a(f"v_and_b32 v{U+1}, 0xffff0000, v{x}")
            a(f"v_mul_f32 v{U}, v{U}, v{G+2*i}")
            a(f"v_mul_f32 v{U+1}, v{U+1}, v{G+2*i+1}")
            a(f"v_cvt_pk_bf16_f32 v{U+2}, v{U}, v{U+1}")
            a(f"v_lshlrev_b32 v{U}, 16, v{U+2}")
            a(f"v_and_b32 v{U+1}, 0xffff0000, v{U+2}")
            a(f"v_add_f32 v{U+4+row}, v{U+4+row}, v{U}")
            a(f"v_add_f32 v{U+4+row}, v{U+4+row}, v{U+1}")
    for ctrl in ["row_shr:1", "row_shr:2", "row_shr:4", "row_shr:8"]:
        a("s_nop 1")
        for row in range(2):
            r = U + 4 + row
            a(f"v_add_f32_dpp v{r}, v{r}, v{r} {ctrl} row_mask:0xf bank_mask:0xf bound_ctrl:0")
    a("s_nop 1")
    for row in range(2):
        r = U + 4 + row
        a(f"v_add_f32_dpp v{r}, v{r}, v{r} row_bcast:15 row_mask:0xa bank_mask:0xf")
    a("s_nop 1")
    for row in range(2):
        r = U + 4 + row
        a(f"v_add_f32_dpp v{r}, v{r}, v{r} row_bcast:31 row_mask:0xc bank_mask:0xf")
    a(f"v_cvt_pk_bf16_f32 v{U}, v{U+4}, v{U+5}")
    a(f"v_lshlrev_b32 v{U+4}, 16, v{U}")
    a(f"v_and_b32 v{U+5}, 0xffff0000, v{U}")
    a(f"s_mov_b32 s{S_T0}, {f32bits(-1.4426950408889634)}")
    for row in range(2):
        a(f"v_mul_f32 v{U+4+row}, s{S_T0}, v{U+4+row}")
    for row in range(2):
        a(f"v_exp_f32 v{U+4+row}, v{U+4+row}")
    a("s_nop 0")
    for row in range(2):
        a(f"v_add_f32 v{U+4+row}, 1.0, v{U+4+row}")
    for row in range(2):
        a(f"v_rcp_f32 v{U+4+row}, v{U+4+row}")
    a("s_nop 0")
    a(f"v_cvt_pk_bf16_f32 v{U}, v{U+4}, v{U+5}")
    a(f"v_lshlrev_b32 v{U+4}, 16, v{U}")
    a(f"v_and_b32 v{U+5}, 0xffff0000, v{U}")
    a(f"v_sub_f32 v{U+6}, 1.0, v{U+4}")
    a(f"v_sub_f32 v{U+7}, 1.0, v{U+5}")
    a(f"v_cvt_pk_bf16_f32 v{U}, v{U+6}, v{U+7}")
    a(f"v_lshlrev_b32 v{U+6}, 16, v{U}")
    a(f"v_and_b32 v{U+7}, 0xffff0000, v{U}")
    a(f"v_mov_b32 v2, s{S_T2}")
    a(f"v_cmp_eq_u32 vcc, 63, v{V_LANE}")
    a("s_and_saveexec_b64 s[62:63], vcc")
    a(f"s_mov_b32 s{S_T0}, {WS_G}")
    a(f"s_mov_b32 s{S_T1}, {WS_OMG}")
    a(f"buffer_store_dwordx2 v[{U+4}:{U+5}], v2, s[{S_WS}:{S_WS+3}], s{S_T0} offen")
    a(f"buffer_store_dwordx2 v[{U+6}:{U+7}], v2, s[{S_WS}:{S_WS+3}], s{S_T1} offen")
    a("s_mov_b64 exec, s[62:63]")

    def mfmas(p):
        L = []
        for m in range(2):
            for c in range(5):
                d = vr(acc(m, c), 16)
                x = ar(frag(p, m), 4)
                b = ar(frag(p, 2 + c), 4)
                if c in (0, 1, 4):
                    L.append(f"v_mfma_f32_32x32x16_bf16 {d}, {x}, {b}, {d}")
                else:
                    L.append(f"v_mfma_f32_32x32x16_bf16 {d}, {b}, {x}, {d}")
        return L

    def reads(ks, p):
        L = []
        L.append(f"ds_read_b128 {ar(frag(p,0),4)}, v{V_XA+ks}")
        L.append(f"ds_read_b128 {ar(frag(p,2),4)}, v{V_DA+ks}")
        L.append(f"ds_read_b128 {ar(frag(p,3),4)}, v{V_DA+ks} offset:4096")
        for c in range(3):
            for pp in range(2):
                L.append(f"ds_read_b64_tr_b16 {ar(frag(p,4+c)+2*pp,2)}, v{V_WA} offset:{4096*c+1024*ks+256*pp}")
        L.append(f"ds_read_b128 {ar(frag(p,1),4)}, v{V_XA+ks} offset:4096")
        return L

    def addr_advance():
        L = [f"s_mov_b32 s{S_RD}, s{S_RSLOT}",
             f"s_add_u32 s{S_RSLOT}, s{S_RSLOT}, {STAGE}",
             f"s_cmp_eq_u32 s{S_RSLOT}, {3*STAGE}",
             f"s_cselect_b32 s{S_RSLOT}, 0, s{S_RSLOT}",
             f"s_sub_u32 s{S_RD}, s{S_RSLOT}, s{S_RD}"]
        for r in list(range(V_XA, V_XA + 4)) + list(range(V_DA, V_DA + 4)) + [V_WA]:
            L.append(f"v_add_u32 v{r}, s{S_RD}, v{r}")
        return L

    def phase(mf, fill):
        if not mf:
            for g in fill:
                for s in g:
                    a(s)
            return
        for i, m in enumerate(mf):
            a(m)
            if i < len(fill):
                for s in fill[i]:
                    a(s)
        for g in fill[len(mf):]:
            for s in g:
                a(s)

    def gaps_of(items, per, start=0):
        g = [[] for _ in range(start)]
        for i in range(0, len(items), per):
            g.append(items[i:i + per])
        return g

    def merge(g1, g2):
        n = max(len(g1), len(g2))
        return [(g1[i] if i < len(g1) else []) + (g2[i] if i < len(g2) else []) for i in range(n)]

    def body(first, dma, vm):
        a(f"s_waitcnt vmcnt({vm})")
        a("s_barrier")
        D = dma_list() if dma else []
        Dp = [[x[0], "s_nop 0", x[1]] for x in D]
        if first:
            fillA = [reads(0, 0)] + Dp[0:5]
            phase([], fillA)
        else:
            adv = addr_advance()
            gA = merge([adv[0:8], adv[8:]], gaps_of(reads(0, 0), 2, 2))
            gA = merge(gA, gaps_of([], 1))
            gA = merge(gA, [[] for _ in range(7)] + Dp[0:3])
            phase(mfmas(1), gA)
        a("s_waitcnt lgkmcnt(0)")
        n0 = 5 if first else 3
        gB = merge(gaps_of(reads(1, 1), 2), [[] for _ in range(5)] + Dp[n0:n0 + 5])
        phase(mfmas(0), gB)
        a("s_waitcnt lgkmcnt(0)")
        rest = Dp[n0 + 5:]
        gC = merge(gaps_of(reads(2, 0), 2), [[] for _ in range(5)] + rest)
        phase(mfmas(1), gC)
        a("s_waitcnt lgkmcnt(0)")
        gD = gaps_of(reads(3, 1), 2)
        if dma:
            gD = merge(gD, [[] for _ in range(5)] + [dma_advance()])
        phase(mfmas(0), gD)
        a("s_waitcnt lgkmcnt(0)")

    a(f"s_mov_b32 s{S_RSLOT}, 0")
    body(True, True, 13 + 2)
    a(f"s_mov_b32 s{S_CNT}, 13")
    a.label("K1_LOOP")
    body(False, True, 13)
    a(f"s_sub_u32 s{S_CNT}, s{S_CNT}, 1")
    a(f"s_cmp_lg_u32 s{S_CNT}, 0")
    a("s_cbranch_scc1 K1_LOOP")
    body(False, False, 13)
    body(False, False, 0)
    phase(mfmas(1), [])
    a(f"v_lshlrev_b32 v{V_ST}, 4, v{V_LANE}")
    a(f"s_lshl_b32 s{S_T0}, s{S_I}, 3")
    a(f"s_lshl_b32 s{S_T1}, s{S_WAVE}, 1")
    a(f"s_add_u32 s{S_T0}, s{S_T0}, s{S_T1}")
    S_OA, S_OQ, S_OKV = 47, 48, 49
    a(f"s_lshl_b32 s{S_OA}, s{S_J}, 17")
    a(f"s_lshl_b32 s{S_T1}, s{S_T0}, 11")
    a(f"s_add_u32 s{S_OA}, s{S_OA}, s{S_T1}")
    if WS_ABF:
        a(f"s_add_u32 s{S_OA}, s{S_OA}, {WS_ABF}")
    a(f"s_add_u32 s50, s{S_OA}, {32*128*1024}")
    a(f"s_lshl_b32 s{S_OQ}, s{S_J}, 17")
    a(f"s_add_u32 s{S_OQ}, s{S_OQ}, s{S_T1}")
    a(f"s_add_u32 s{S_OQ}, s{S_OQ}, {WS_QF}")
    a(f"s_lshl_b32 s{S_OKV}, s{S_J}, 18")
    a(f"s_lshl_b32 s{S_T1}, s{S_T0}, 12")
    a(f"s_add_u32 s{S_OKV}, s{S_OKV}, s{S_T1}")
    a(f"s_add_u32 s{S_OKV}, s{S_OKV}, {WS_KVF}")
    a(f"s_mov_b32 s52, {f32bits(QSCALE)}")
    a(f"s_mov_b32 s53, {f32bits(QSCALE)}")
    a("s_nop 7")
    a("s_nop 7")
    tmp = [T, T + 8, T + 16, T + 24]
    ti = 0
    for m in range(2):
        for c in range(5):
            d = acc(m, c)
            P = tmp[ti % 4]
            ti += 1
            if c == 2:
                for r in range(0, 16, 2):
                    a(f"v_pk_mul_f32 v[{d+r}:{d+r+1}], v[{d+r}:{d+r+1}], s[52:53]")
            for r in range(8):
                if c == 1:
                    a(f"v_cvt_pk_bf16_f32 v{P+r}, -v{d+2*r}, -v{d+2*r+1}")
                else:
                    a(f"v_cvt_pk_bf16_f32 v{P+r}, v{d+2*r}, v{d+2*r+1}")
            if c in (0, 1):
                a("s_nop 1")
                for f in range(2):
                    a(f"v_permlane32_swap_b32 v{P+4*f}, v{P+4*f+2}")
                    a(f"v_permlane32_swap_b32 v{P+4*f+1}, v{P+4*f+3}")
                so = S_OA if c == 0 else 50
                for f in range(2):
                    a(f"buffer_store_dwordx4 v[{P+4*f}:{P+4*f+3}], v{V_ST}, s[{S_WS}:{S_WS+3}], s{so} offen offset:{2048*m+1024*f}")
            elif c == 2:
                for f in range(2):
                    a(f"buffer_store_dwordx4 v[{P+4*f}:{P+4*f+3}], v{V_ST}, s[{S_WS}:{S_WS+3}], s{S_OQ} offen offset:{2048*m+1024*f}")
            else:
                base = 0 if c == 3 else 2048
                so = S_OKV if m == 0 else 51
                if m == 1 and c == 3:
                    a(f"s_add_u32 s51, s{S_OKV}, 4096")
                for f in range(2):
                    a(f"buffer_store_dwordx4 v[{P+4*f}:{P+4*f+3}], v{V_ST}, s[{S_WS}:{S_WS+3}], s{so} offen offset:{base+1024*f}")
    a("s_waitcnt vmcnt(0)")
    a.label("K1_END")
    a("s_endpgm")
    return dict(name=NAME, grid=256, block=256, lds=LDS_BYTES, nvgpr=256 + 56, accum=256)
```

```python
from common import *

NAME = "k2_attn_kernel"
NSLOT = 4
STAGE = 16384
LDS_BYTES = NSLOT * STAGE + 64
FLAG_OFF = NSLOT * STAGE
SHIFT = 32.0


def f32bits(x):
    import struct
    return struct.unpack("<I", struct.pack("<f", x))[0]


def gen(a):
    kernel_header(a, NAME)
    V_LANE = 1
    V_DOFF = 2
    V_RA = 3
    V_OMG = 4
    V_T0, V_T1, V_T2 = 5, 6, 7
    Q = 8
    NEGM = 16
    S = [32, 48]
    P = 64
    O = 72
    KB = [88, 96]
    VB = [104, 112]
    LS = 120
    S_WS = 8
    S_WAVE, S_HEAD, S_T = 32, 33, 34
    S_GOFF = 35
    S_M0 = 36
    S_CNT = 37
    S_T0, S_T1, S_T2 = 40, 41, 42
    S_PASS = 43
    S_KVBASE = 44
    S_RD = 45

    a("s_cmp_ge_u32 s2, 256")
    a("s_cbranch_scc1 K2_END")
    a(f"s_load_dwordx2 s[60:61], s[0:1], {KA_WS}")
    a(f"v_and_b32 v{V_LANE}, 63, v0")
    a(f"v_lshrrev_b32 v{V_T0}, 6, v0")
    a("s_nop 0")
    a(f"v_readfirstlane_b32 s{S_WAVE}, v{V_T0}")
    a(f"s_and_b32 s{S_T0}, s2, 7")
    a(f"s_lshl_b32 s{S_HEAD}, s{S_T0}, 2")
    a(f"s_lshr_b32 s{S_T1}, s2, 6")
    a(f"s_add_u32 s{S_HEAD}, s{S_HEAD}, s{S_T1}")
    a(f"s_lshr_b32 s{S_T1}, s2, 3")
    a(f"s_and_b32 s{S_T1}, s{S_T1}, 7")
    a(f"s_lshl_b32 s{S_T}, s{S_T1}, 3")
    a(f"s_add_u32 s{S_T}, s{S_T}, s{S_WAVE}")
    a(f"v_lshlrev_b32 v{V_RA}, 4, v{V_LANE}")
    a(f"s_lshl_b32 s{S_T0}, s{S_WAVE}, 11")
    a(f"v_add_u32 v{V_DOFF}, s{S_T0}, v{V_RA}")
    a(f"s_lshl_b32 s{S_KVBASE}, s{S_HEAD}, 18")
    a(f"s_add_u32 s{S_KVBASE}, s{S_KVBASE}, {WS_KVF}")
    a("s_waitcnt lgkmcnt(0)")
    srd(a, S_WS, 60, WS_SIZE)
    a(f"s_lshl_b32 s{S_T0}, s{S_HEAD}, 17")
    a(f"s_lshl_b32 s{S_T1}, s{S_T}, 11")
    a(f"s_add_u32 s{S_T0}, s{S_T0}, s{S_T1}")
    a(f"s_add_u32 s{S_T0}, s{S_T0}, {WS_QF}")
    a(f"buffer_load_dwordx4 v[{Q}:{Q+3}], v{V_RA}, s[{S_WS}:{S_WS+3}], s{S_T0} offen")
    a(f"buffer_load_dwordx4 v[{Q+4}:{Q+7}], v{V_RA}, s[{S_WS}:{S_WS+3}], s{S_T0} offen offset:1024")
    a(f"v_and_b32 v{V_T0}, 31, v{V_LANE}")
    a(f"v_lshlrev_b32 v{V_T0}, 2, v{V_T0}")
    a(f"s_lshl_b32 s{S_T0}, s{S_T}, 7")
    a(f"s_add_u32 s{S_T0}, s{S_T0}, {WS_OMG}")
    a(f"buffer_load_dword v{V_OMG}, v{V_T0}, s[{S_WS}:{S_WS+3}], s{S_T0} offen")
    a(f"s_mov_b32 s{S_PASS}, 0")

    def dma():
        return [f"s_mov_b32 m0, s{S_M0}",
                "s_nop 0",
                f"buffer_load_dwordx4 v{V_DOFF}, s[{S_WS}:{S_WS+3}], s{S_GOFF} offen lds",
                f"buffer_load_dwordx4 v{V_DOFF}, s[{S_WS}:{S_WS+3}], s{S_GOFF} offen offset:1024 lds",
                f"s_add_u32 s{S_GOFF}, s{S_GOFF}, {STAGE}",
                f"s_add_u32 s{S_M0}, s{S_M0}, {STAGE}",
                f"s_and_b32 s{S_M0}, s{S_M0}, {NSLOT*STAGE-1}"]

    def start_stream():
        a(f"s_mov_b32 s{S_GOFF}, s{S_KVBASE}")
        a(f"s_lshl_b32 s{S_M0}, s{S_WAVE}, 11")
        a(f"v_lshlrev_b32 v{V_RA}, 4, v{V_LANE}")
        for _ in range(NSLOT - 1):
            for s in dma():
                a(s)

    def rdK(buf, tile):
        return [f"ds_read_b128 v[{KB[buf]}:{KB[buf]+3}], v{V_RA} offset:{4096*tile}",
                f"ds_read_b128 v[{KB[buf]+4}:{KB[buf]+7}], v{V_RA} offset:{4096*tile+1024}"]

    def rdV(buf, tile):
        return [f"ds_read_b128 v[{VB[buf]}:{VB[buf]+3}], v{V_RA} offset:{4096*tile+2048}",
                f"ds_read_b128 v[{VB[buf]+4}:{VB[buf]+7}], v{V_RA} offset:{4096*tile+3072}"]

    def qk(sbuf, kbuf, c):
        s = vr(S[sbuf], 16)
        return [f"v_mfma_f32_32x32x16_bf16 {s}, v[{KB[kbuf]}:{KB[kbuf]+3}], v[{Q}:{Q+3}], {c}",
                f"v_mfma_f32_32x32x16_bf16 {s}, v[{KB[kbuf]+4}:{KB[kbuf]+7}], v[{Q+4}:{Q+7}], {s}"]

    def pv(vbuf, f):
        o = vr(O, 16)
        return f"v_mfma_f32_32x32x16_bf16 {o}, v[{VB[vbuf]+4*f}:{VB[vbuf]+4*f+3}], v[{P+4*f}:{P+4*f+3}], {o}"

    def ra_advance():
        return [f"v_add_u32 v{V_RA}, {STAGE}, v{V_RA}",
                f"v_and_b32 v{V_RA}, {NSLOT*STAGE-1}, v{V_RA}"]

    start_stream()
    a(f"s_waitcnt vmcnt({2*(NSLOT-2)})")
    a("s_barrier")
    for s in rdK(0, 0):
        a(s)
    a("s_waitcnt lgkmcnt(0)")
    for s in qk(0, 0, "0"):
        a(s)
    a("s_nop 7")
    a("s_nop 7")
    s0 = S[0]
    a(f"v_max3_f32 v{V_T0}, v{s0}, v{s0+1}, v{s0+2}")
    for i in range(3, 15, 2):
        a(f"v_max3_f32 v{V_T0}, v{V_T0}, v{s0+i}, v{s0+i+1}")
    a(f"v_max_f32 v{V_T0}, v{V_T0}, v{s0+15}")
    a(f"v_mov_b32 v{V_T1}, v{V_T0}")
    a("s_nop 1")
    a(f"v_permlane32_swap_b32 v{V_T0}, v{V_T1}")
    a(f"v_max_f32 v{V_T0}, v{V_T0}, v{V_T1}")
    a(f"s_mov_b32 s{S_T0}, {f32bits(-SHIFT)}")
    a(f"v_sub_f32 v{V_T0}, s{S_T0}, v{V_T0}")
    a.label("K2_MAIN")
    for i in range(16):
        a(f"v_mov_b32 v{NEGM+i}, v{V_T0}")
    for i in range(16):
        a(f"v_mov_b32 v{O+i}, 0")
    for i in range(4):
        a(f"v_mov_b32 v{LS+i}, 0")
    for s in rdK(1, 1) + rdV(0, 0):
        a(s)
    negm = vr(NEGM, 16)
    for s in qk(0, 0, negm):
        a(s)
    a("s_nop 7")
    a("s_nop 3")

    def step(nl, last_stage, dma_on, vm):
        p = nl & 1
        sc = S[p]
        pre = []
        rd = []
        if nl == 2:
            rd += rdV(1 - p, 3)
            if not last_stage:
                pre = [f"s_waitcnt vmcnt({vm})", "s_barrier"]
                rd += ra_advance()
                rd += rdK(p, 0)
                if dma_on:
                    rd += dma()
        elif nl == 3:
            if not last_stage:
                rd += rdK(p, 1) + rdV(1 - p, 0)
        else:
            rd += rdK(p, nl + 2) + rdV(1 - p, nl + 1)
        has_next = not (last_stage and nl == 3)
        a("s_waitcnt lgkmcnt(0)")
        for s in pre:
            a(s)
        q2 = qk(1 - p, 1 - p, negm) if has_next else []
        ex = [f"v_exp_f32 v{sc+i}, v{sc+i}" for i in range(16)]
        cv = [f"v_cvt_pk_bf16_f32 v{P+i}, v{sc+2*i}, v{sc+2*i+1}" for i in range(8)]
        ad = [f"v_pk_add_f32 v[{LS+2*(i&1)}:{LS+2*(i&1)+1}], v[{LS+2*(i&1)}:{LS+2*(i&1)+1}], v[{sc+2*i}:{sc+2*i+1}]" for i in range(8)]
        seq = []
        if q2:
            seq.append(q2[0])
        seq += rd[:2]
        seq += ex[0:4]
        if q2:
            seq.append(q2[1])
        seq += rd[2:]
        seq += [ex[4], cv[0], ex[5], cv[1], ex[6], ad[0], ex[7], ad[1]]
        seq += [ex[8], cv[2], ex[9], cv[3], ex[10], ad[2]]
        seq.append(pv(p, 0))
        seq += [ex[11], ad[3], ex[12], cv[4], ex[13], cv[5], ex[14], ad[4], ex[15], ad[5]]
        seq += [cv[6], ad[6], cv[7], ad[7], "s_nop 0"]
        seq.append(pv(p, 1))
        for s in seq:
            a(s)

    a(f"s_mov_b32 s{S_CNT}, {16-(NSLOT-1)}")
    a.label("K2_LOOP")
    for nl in range(4):
        step(nl, False, True, 2 * (NSLOT - 3) if NSLOT > 3 else 0)
    a(f"s_sub_u32 s{S_CNT}, s{S_CNT}, 1")
    a(f"s_cmp_lg_u32 s{S_CNT}, 0")
    a("s_cbranch_scc1 K2_LOOP")
    for r in range(NSLOT - 1):
        last = (r == NSLOT - 2)
        vm = max(0, 2 * (NSLOT - 3 - r))
        for nl in range(4):
            step(nl, last, False, vm)
    a("s_nop 7")
    a("s_nop 7")
    a(f"v_pk_add_f32 v[{LS}:{LS+1}], v[{LS}:{LS+1}], v[{LS+2}:{LS+3}]")
    a(f"v_add_f32 v{V_T0}, v{LS}, v{LS+1}")
    a(f"v_mov_b32 v{V_T1}, v{V_T0}")
    a("s_nop 1")
    a(f"v_permlane32_swap_b32 v{V_T0}, v{V_T1}")
    a(f"v_add_f32 v{V_T0}, v{V_T0}, v{V_T1}")
    a(f"s_cmp_lg_u32 s{S_PASS}, 0")
    a("s_cbranch_scc1 K2_STORE")
    a(f"v_mul_f32 v{V_T1}, 0, v{O}")
    for i in range(1, 16):
        a(f"v_fma_f32 v{V_T1}, 0, v{O+i}, v{V_T1}")
    a(f"v_add_f32 v{V_T1}, v{V_T1}, v{V_T0}")
    a(f"s_mov_b32 s{S_T0}, {f32bits(2.0**100)}")
    a(f"v_cmp_nlt_f32 vcc, v{V_T1}, s{S_T0}")
    a("s_nop 1")
    a(f"s_cmp_lg_u64 vcc, 0")
    a(f"s_cselect_b32 s{S_T0}, 1, 0")
    a(f"v_mov_b32 v{V_T2}, {FLAG_OFF}")
    a(f"v_mov_b32 v{V_T1}, 0")
    a("s_barrier")
    a(f"ds_write_b32 v{V_T2}, v{V_T1}")
    a("s_waitcnt lgkmcnt(0)")
    a("s_barrier")
    a(f"v_mov_b32 v{V_T1}, s{S_T0}")
    a(f"ds_or_b32 v{V_T2}, v{V_T1}")
    a("s_waitcnt lgkmcnt(0)")
    a("s_barrier")
    a(f"ds_read_b32 v{V_T1}, v{V_T2}")
    a("s_waitcnt lgkmcnt(0)")
    a(f"v_readfirstlane_b32 s{S_T0}, v{V_T1}")
    a("s_nop 3")
    a(f"s_cmp_eq_u32 s{S_T0}, 0")
    a("s_cbranch_scc1 K2_STORE")
    a(f"s_mov_b32 s{S_PASS}, 1")
    start_stream()
    a(f"v_mov_b32 v{V_T0}, 0xff800000")
    a(f"s_mov_b32 s{S_CNT}, 0")
    a.label("K2_MAXLOOP")
    a("s_waitcnt vmcnt(0)")
    a("s_barrier")
    for tile in range(4):
        for s in rdK(0, tile):
            a(s)
        a("s_waitcnt lgkmcnt(0)")
        for s in qk(0, 0, "0"):
            a(s)
        a("s_nop 7")
        a("s_nop 7")
        for i in range(0, 16, 2):
            a(f"v_max3_f32 v{V_T0}, v{V_T0}, v{s0+i}, v{s0+i+1}")
    a("s_barrier")
    for s in ra_advance():
        a(s)
    a(f"s_add_u32 s{S_CNT}, s{S_CNT}, 1")
    a(f"s_cmp_gt_u32 s{S_CNT}, {16-(NSLOT-1)}")
    a("s_cbranch_scc1 K2_MAXNODMA")
    for s in dma():
        a(s)
    a.label("K2_MAXNODMA")
    a(f"s_cmp_lt_u32 s{S_CNT}, 16")
    a("s_cbranch_scc1 K2_MAXLOOP")
    a(f"v_mov_b32 v{V_T1}, v{V_T0}")
    a("s_nop 1")
    a(f"v_permlane32_swap_b32 v{V_T0}, v{V_T1}")
    a(f"v_max_f32 v{V_T0}, v{V_T0}, v{V_T1}")
    a(f"v_sub_f32 v{V_T0}, 0, v{V_T0}")
    start_stream()
    a(f"s_waitcnt vmcnt({2*(NSLOT-2)})")
    a("s_barrier")
    for s in rdK(0, 0):
        a(s)
    a("s_waitcnt lgkmcnt(0)")
    a("s_branch K2_MAIN")
    a.label("K2_STORE")
    a(f"v_rcp_f32 v{V_T0}, v{V_T0}")
    a("s_nop 0")
    a(f"v_mul_f32 v{V_T0}, v{V_T0}, v{V_OMG}")
    for i in range(16):
        a(f"v_mul_f32 v{O+i}, v{O+i}, v{V_T0}")
    for i in range(8):
        a(f"v_cvt_pk_bf16_f32 v{P+i}, v{O+2*i}, v{O+2*i+1}")
    a("s_nop 1")
    for f in range(2):
        a(f"v_permlane32_swap_b32 v{P+4*f}, v{P+4*f+2}")
        a(f"v_permlane32_swap_b32 v{P+4*f+1}, v{P+4*f+3}")
    a(f"v_and_b32 v{V_T0}, 31, v{V_LANE}")
    a(f"v_lshlrev_b32 v{V_T0}, 11, v{V_T0}")
    a(f"v_lshrrev_b32 v{V_T1}, 5, v{V_LANE}")
    a(f"v_lshl_add_u32 v{V_T0}, v{V_T1}, 4, v{V_T0}")
    a(f"s_lshl_b32 s{S_T0}, s{S_T}, 16")
    a(f"s_lshl_b32 s{S_T1}, s{S_HEAD}, 6")
    a(f"s_add_u32 s{S_T0}, s{S_T0}, s{S_T1}")
    a(f"s_add_u32 s{S_T0}, s{S_T0}, {WS_OP}")
    a(f"buffer_store_dwordx4 v[{P}:{P+3}], v{V_T0}, s[{S_WS}:{S_WS+3}], s{S_T0} offen")
    a(f"buffer_store_dwordx4 v[{P+4}:{P+7}], v{V_T0}, s[{S_WS}:{S_WS+3}], s{S_T0} offen offset:32")
    a("s_waitcnt vmcnt(0)")
    a.label("K2_END")
    a("s_endpgm")
    return dict(name=NAME, grid=256, block=512, lds=LDS_BYTES, nvgpr=128, accum=128)
```

```python
from common import *

NAME = "k3_seqdft_kernel"
STAGE = 32768
NSLOT = 3
LDS_BYTES = NSLOT * STAGE
OFF_B = 16384
NIT = 32


def gen(a):
    kernel_header(a, NAME)
    V_LANE = 1
    V_COFF = 8
    V_BOFF = 12
    V_CA = 16
    V_BA = 20
    ACC = 32
    FR = 96
    T = 128
    S_C, S_WS = 8, 12
    S_WAVE, S_Z, S_MT, S_NT = 32, 33, 34, 35
    S_KC, S_KB = 36, 37
    S_MC, S_MB = 38, 39
    S_RD, S_CNT, S_WSLOT, S_RSLOT = 40, 41, 42, 43
    S_T0, S_T1, S_T2 = 44, 45, 46

    def acc(mi, ni):
        return ACC + (mi * 2 + ni) * 16

    def frag(p, i):
        return FR + 16 * p + 4 * i

    a("s_cmp_ge_u32 s2, 256")
    a("s_cbranch_scc1 K3_END")
    a(f"s_load_dwordx4 s[48:51], s[0:1], {KA_SRE}")
    a(f"s_load_dwordx2 s[60:61], s[0:1], {KA_WS}")
    a(f"v_and_b32 v{V_LANE}, 63, v0")
    a("v_lshrrev_b32 v2, 6, v0")
    a("s_nop 0")
    a(f"v_readfirstlane_b32 s{S_WAVE}, v2")
    a(f"s_and_b32 s{S_Z}, s2, 1")
    a(f"s_bfe_u32 s{S_T0}, s2, 0x20001")
    a(f"s_lshl_b32 s{S_MT}, s{S_T0}, 2")
    a(f"s_bfe_u32 s{S_T0}, s2, 0x20003")
    a(f"s_add_u32 s{S_MT}, s{S_MT}, s{S_T0}")
    a(f"s_lshr_b32 s{S_NT}, s2, 5")
    a(f"v_lshrrev_b32 v2, 3, v{V_LANE}")
    a(f"v_and_b32 v3, 7, v{V_LANE}")
    a(f"v_lshrrev_b32 v4, 4, v{V_LANE}")
    a(f"v_xor_b32 v5, v3, v4")
    a(f"v_xor_b32 v6, 4, v5")
    a(f"v_lshlrev_b32 v5, 4, v5")
    a(f"v_lshlrev_b32 v6, 4, v6")
    a(f"v_lshl_add_u32 v5, v2, 12, v5")
    a(f"v_lshl_add_u32 v6, v2, 12, v6")
    a(f"s_lshl_b32 s{S_T0}, s{S_MT}, 7")
    a(f"s_lshl_b32 s{S_T1}, s{S_WAVE}, 5")
    a(f"s_add_u32 s{S_T0}, s{S_T0}, s{S_T1}")
    a(f"s_lshl_b32 s{S_T0}, s{S_T0}, 12")
    for q in range(4):
        a(f"s_add_u32 s{S_T1}, s{S_T0}, {q*8*4096}")
        a(f"v_add_u32 v{V_COFF+q}, s{S_T1}, v{5+(q&1)}")
    a(f"v_lshlrev_b32 v{V_BOFF}, 4, v{V_LANE}")
    a(f"v_and_b32 v2, 31, v{V_LANE}")
    a(f"v_lshrrev_b32 v3, 5, v{V_LANE}")
    a(f"v_bfe_u32 v4, v{V_LANE}, 1, 3")
    a(f"s_and_b32 s{S_T0}, s{S_WAVE}, 1")
    a(f"s_lshl_b32 s{S_T0}, s{S_T0}, 13")
    for ks in range(4):
        a(f"v_add_u32 v5, {2*ks}, v3")
        a(f"v_xor_b32 v5, v5, v4")
        a(f"v_lshlrev_b32 v5, 4, v5")
        a(f"v_lshl_add_u32 v5, v2, 7, v5")
        a(f"v_add_u32 v{V_CA+ks}, s{S_T0}, v5")
    a(f"s_lshr_b32 s{S_T0}, s{S_WAVE}, 1")
    a(f"s_lshl_b32 s{S_T0}, s{S_T0}, 13")
    a(f"s_add_u32 s{S_T0}, s{S_T0}, {OFF_B}")
    a(f"v_add_u32 v{V_BA}, s{S_T0}, v{V_BOFF}")
    a("s_waitcnt lgkmcnt(0)")
    a(f"s_cmp_eq_u32 s{S_Z}, 0")
    a("s_cselect_b32 s52, s48, s50")
    a("s_cselect_b32 s53, s49, s51")
    srd(a, S_C, 52, 2048 * 2048 * 2)
    srd(a, S_WS, 60, WS_SIZE)
    a(f"s_mov_b32 s{S_KC}, 0")
    a(f"s_lshl_b32 s{S_T0}, s{S_Z}, 5")
    a(f"s_lshl_b32 s{S_T1}, s{S_NT}, 2")
    a(f"s_add_u32 s{S_T0}, s{S_T0}, s{S_T1}")
    a(f"s_add_u32 s{S_T0}, s{S_T0}, s{S_WAVE}")
    a(f"s_lshl_b32 s{S_KB}, s{S_T0}, 17")
    if WS_ABF:
        a(f"s_add_u32 s{S_KB}, s{S_KB}, {WS_ABF}")
    a(f"s_mov_b32 s{S_WSLOT}, 0")
    a(f"s_lshl_b32 s{S_MC}, s{S_WAVE}, 12")
    a(f"s_add_u32 s{S_MB}, s{S_MC}, {OFF_B}")

    def dma_list():
        L = []
        for q in range(4):
            L.append([f"s_add_u32 m0, s{S_MC}, {1024*q}", "s_nop 0",
                      f"buffer_load_dwordx4 v{V_COFF+q}, s[{S_C}:{S_C+3}], s{S_KC} offen lds"])
        L.append([f"s_mov_b32 m0, s{S_MB}", "s_nop 0",
                  f"buffer_load_dwordx4 v{V_BOFF}, s[{S_WS}:{S_WS+3}], s{S_KB} offen lds"])
        for q in range(1, 4):
            L.append([f"buffer_load_dwordx4 v{V_BOFF}, s[{S_WS}:{S_WS+3}], s{S_KB} offen offset:{1024*q} lds"])
        return L

    def dma_advance():
        return [f"s_add_u32 s{S_KC}, s{S_KC}, 128",
                f"s_add_u32 s{S_KB}, s{S_KB}, 4096",
                f"s_add_u32 s{S_WSLOT}, s{S_WSLOT}, {STAGE}",
                f"s_cmp_eq_u32 s{S_WSLOT}, {NSLOT*STAGE}",
                f"s_cselect_b32 s{S_WSLOT}, 0, s{S_WSLOT}",
                f"s_lshl_b32 s{S_T0}, s{S_WAVE}, 12",
                f"s_add_u32 s{S_MC}, s{S_WSLOT}, s{S_T0}",
                f"s_add_u32 s{S_MB}, s{S_MC}, {OFF_B}"]

    for st in range(NSLOT - 1):
        for grp in dma_list():
            for s in grp:
                a(s)
        for s in dma_advance():
            a(s)
    for r in range(64):
        a(f"v_mov_b32 v{ACC+r}, 0")

    def mfmas(p):
        L = []
        for mi in range(2):
            for ni in range(2):
                d = vr(acc(mi, ni), 16)
                L.append(f"v_mfma_f32_32x32x16_bf16 {d}, {vr(frag(p,2+ni),4)}, {vr(frag(p,mi),4)}, {d}")
        return L

    def reads(ks, p):
        return [f"ds_read_b128 {vr(frag(p,0),4)}, v{V_CA+ks}",
                f"ds_read_b128 {vr(frag(p,2),4)}, v{V_BA} offset:{1024*ks}",
                f"ds_read_b128 {vr(frag(p,3),4)}, v{V_BA} offset:{4096+1024*ks}",
                f"ds_read_b128 {vr(frag(p,1),4)}, v{V_CA+ks} offset:4096"]

    def addr_advance():
        L = [f"s_mov_b32 s{S_RD}, s{S_RSLOT}",
             f"s_add_u32 s{S_RSLOT}, s{S_RSLOT}, {STAGE}",
             f"s_cmp_eq_u32 s{S_RSLOT}, {NSLOT*STAGE}",
             f"s_cselect_b32 s{S_RSLOT}, 0, s{S_RSLOT}",
             f"s_sub_u32 s{S_RD}, s{S_RSLOT}, s{S_RD}"]
        for r in list(range(V_CA, V_CA + 4)) + [V_BA]:
            L.append(f"v_add_u32 v{r}, s{S_RD}, v{r}")
        return L

    def phase(mf, fill):
        for i in range(max(len(mf), len(fill))):
            if i < len(mf):
                a(mf[i])
            if i < len(fill):
                for s in fill[i]:
                    a(s)

    def flat(x):
        return [s for g in x for s in g]

    def body(first, dma, vm):
        D = dma_list() if dma else [[] for _ in range(8)]
        if not first:
            for s in addr_advance():
                a(s)
        a(f"s_waitcnt vmcnt({vm})")
        a("s_barrier")
        r0 = reads(0, 0)
        if first:
            phase([], [r0, D[0], D[1]])
        else:
            phase(mfmas(1), [r0[0:2], r0[2:4], D[0], D[1]])
        a("s_waitcnt lgkmcnt(0)")
        r = reads(1, 1)
        phase(mfmas(0), [r[0:2], r[2:4], D[2], D[3]])
        a("s_waitcnt lgkmcnt(0)")
        r = reads(2, 0)
        phase(mfmas(1), [r[0:2], r[2:4], D[4] + D[5], D[6] + D[7]])
        a("s_waitcnt lgkmcnt(0)")
        r = reads(3, 1)
        phase(mfmas(0), [r[0:2], r[2:4], dma_advance() if dma else []])
        a("s_waitcnt lgkmcnt(0)")

    a(f"s_mov_b32 s{S_RSLOT}, 0")
    body(True, True, 8 * (NSLOT - 2))
    a(f"s_mov_b32 s{S_CNT}, {NIT - (NSLOT-1) - 1}")
    a.label("K3_LOOP")
    body(False, True, 8 * (NSLOT - 2))
    a(f"s_sub_u32 s{S_CNT}, s{S_CNT}, 1")
    a(f"s_cmp_lg_u32 s{S_CNT}, 0")
    a("s_cbranch_scc1 K3_LOOP")
    for r in range(NSLOT - 1):
        body(False, False, 8 * (NSLOT - 2 - r))
    phase(mfmas(1), [])
    a(f"s_and_b32 s{S_T0}, s{S_WAVE}, 1")
    a(f"s_lshl_b32 s{S_T0}, s{S_T0}, 1")
    a(f"s_lshl_b32 s{S_T1}, s{S_MT}, 2")
    a(f"s_add_u32 s{S_T0}, s{S_T0}, s{S_T1}")
    a(f"s_lshl_b32 s{S_T1}, s{S_Z}, 6")
    a(f"s_add_u32 s{S_T0}, s{S_T0}, s{S_T1}")
    a(f"s_lshl_b32 s{S_T0}, s{S_T0}, 5")
    a(f"s_lshr_b32 s{S_T1}, s{S_WAVE}, 1")
    a(f"s_lshl_b32 s{S_T1}, s{S_T1}, 1")
    a(f"s_add_u32 s{S_T0}, s{S_T0}, s{S_T1}")
    a(f"s_lshl_b32 s{S_T1}, s{S_NT}, 2")
    a(f"s_add_u32 s{S_T0}, s{S_T0}, s{S_T1}")
    a(f"s_lshl_b32 s{S_T0}, s{S_T0}, 11")
    a(f"s_add_u32 s{S_T0}, s{S_T0}, {WS_Y}")
    a(f"s_add_u32 s{S_T1}, s{S_T0}, {32*2048}")
    a("s_nop 7")
    a("s_nop 3")
    for mi in range(2):
        for ni in range(2):
            d = acc(mi, ni)
            P = T + (mi * 2 + ni) * 8
            for r in range(8):
                a(f"v_cvt_pk_bf16_f32 v{P+r}, v{d+2*r}, v{d+2*r+1}")
            so = S_T0 if mi == 0 else S_T1
            for f in range(2):
                a(f"buffer_store_dwordx4 v[{P+4*f}:{P+4*f+3}], v{V_BOFF}, s[{S_WS}:{S_WS+3}], s{so} offen offset:{2048*ni+1024*f}")
    a("s_waitcnt vmcnt(0)")
    a.label("K3_END")
    a("s_endpgm")
    return dict(name=NAME, grid=256, block=256, lds=LDS_BYTES, nvgpr=160, accum=160)
```

```python
from common import *

NAME = "k4_out_kernel"
STAGE = 24576
NSLOT = 4
LDS_BYTES = NSLOT * STAGE
OFF_W = 16384
NIT = 16


def gen(a):
    kernel_header(a, NAME)
    V_LANE = 1
    V_AOFF = 8
    V_WOFF = 12
    V_L16 = 14
    V_G = 15
    V_AA = 16
    V_WA = 20
    V_ST = 21
    ACC = 32
    FR = 64
    Y = 96
    T = 128
    S_OUT, S_WS, S_WO = 8, 12, 16
    S_WAVE, S_MT, S_NT = 32, 34, 35
    S_KA, S_KW = 36, 37
    S_MA, S_MW = 38, 39
    S_RD, S_CNT, S_WSLOT, S_RSLOT = 40, 41, 42, 43
    S_T0, S_T1, S_T2 = 44, 45, 46

    def acc(ni):
        return ACC + ni * 16

    def frag(p, i):
        return FR + 12 * p + 4 * i

    a("s_cmp_ge_u32 s2, 256")
    a("s_cbranch_scc1 K4_END")
    a(f"s_load_dwordx2 s[48:49], s[0:1], {KA_WO}")
    a(f"s_load_dwordx2 s[50:51], s[0:1], {KA_OUT}")
    a(f"s_load_dwordx2 s[60:61], s[0:1], {KA_WS}")
    a(f"v_and_b32 v{V_LANE}, 63, v0")
    a("v_lshrrev_b32 v2, 6, v0")
    a("s_nop 0")
    a(f"v_readfirstlane_b32 s{S_WAVE}, v2")
    a(f"s_and_b32 s{S_MT}, s2, 7")
    a(f"s_lshl_b32 s{S_MT}, s{S_MT}, 1")
    a(f"s_bfe_u32 s{S_T0}, s2, 0x10003")
    a(f"s_add_u32 s{S_MT}, s{S_MT}, s{S_T0}")
    a(f"s_lshr_b32 s{S_NT}, s2, 4")
    a(f"v_lshrrev_b32 v2, 3, v{V_LANE}")
    a(f"v_and_b32 v3, 7, v{V_LANE}")
    a(f"v_lshrrev_b32 v4, 4, v{V_LANE}")
    a(f"v_xor_b32 v5, v3, v4")
    a(f"v_xor_b32 v6, 4, v5")
    a(f"v_lshlrev_b32 v5, 4, v5")
    a(f"v_lshlrev_b32 v6, 4, v6")
    a(f"v_lshl_add_u32 v5, v2, 11, v5")
    a(f"v_lshl_add_u32 v6, v2, 11, v6")
    a(f"s_lshl_b32 s{S_T0}, s{S_MT}, 7")
    a(f"s_lshl_b32 s{S_T1}, s{S_WAVE}, 5")
    a(f"s_add_u32 s{S_T2}, s{S_T0}, s{S_T1}")
    a(f"s_lshl_b32 s{S_T0}, s{S_T2}, 11")
    for q in range(4):
        a(f"s_add_u32 s{S_T1}, s{S_T0}, {q*8*2048}")
        a(f"v_add_u32 v{V_AOFF+q}, s{S_T1}, v{5+(q&1)}")
    a(f"v_lshrrev_b32 v2, 2, v{V_LANE}")
    a(f"s_lshl_b32 s{S_T0}, s{S_WAVE}, 4")
    a(f"v_add_u32 v2, s{S_T0}, v2")
    a(f"v_lshlrev_b32 v2, 11, v2")
    a(f"v_and_b32 v3, 3, v{V_LANE}")
    a(f"v_lshl_add_u32 v2, v3, 4, v2")
    a(f"s_lshl_b32 s{S_T0}, s{S_NT}, 7")
    a(f"v_add_u32 v{V_WOFF}, s{S_T0}, v2")
    a(f"v_add_u32 v{V_WOFF+1}, 64, v{V_WOFF}")
    a(f"v_lshlrev_b32 v{V_L16}, 4, v{V_LANE}")
    a(f"v_and_b32 v2, 31, v{V_LANE}")
    a(f"v_lshrrev_b32 v3, 5, v{V_LANE}")
    a(f"v_bfe_u32 v4, v{V_LANE}, 1, 3")
    a(f"s_lshl_b32 s{S_T0}, s{S_WAVE}, 12")
    for ks in range(4):
        a(f"v_add_u32 v5, {2*ks}, v3")
        a(f"v_xor_b32 v5, v5, v4")
        a(f"v_lshlrev_b32 v5, 4, v5")
        a(f"v_lshl_add_u32 v5, v2, 7, v5")
        a(f"v_add_u32 v{V_AA+ks}, s{S_T0}, v5")
    a(f"v_bfe_u32 v4, v{V_LANE}, 2, 2")
    a(f"v_lshl_add_u32 v4, v3, 3, v4")
    a(f"v_lshlrev_b32 v4, 6, v4")
    a(f"v_bfe_u32 v5, v{V_LANE}, 4, 1")
    a(f"v_lshl_add_u32 v4, v5, 5, v4")
    a(f"v_and_b32 v5, 3, v{V_LANE}")
    a(f"v_lshl_add_u32 v4, v5, 3, v4")
    a(f"v_add_u32 v{V_WA}, {OFF_W}, v4")
    a(f"v_lshlrev_b32 v{V_ST}, 11, v2")
    a(f"v_lshl_add_u32 v{V_ST}, v3, 4, v{V_ST}")
    a("s_waitcnt lgkmcnt(0)")
    srd(a, S_WO, 48, 1024 * 1024 * 2)
    srd(a, S_OUT, 50, 2048 * 1024 * 2)
    srd(a, S_WS, 60, WS_SIZE)
    a(f"s_mov_b32 s{S_KA}, {WS_OP}")
    a(f"s_mov_b32 s{S_KW}, 0")
    a(f"s_mov_b32 s{S_WSLOT}, 0")
    a(f"s_lshl_b32 s{S_MA}, s{S_WAVE}, 12")
    a(f"s_lshl_b32 s{S_MW}, s{S_WAVE}, 10")

    def dma_list():
        L = []
        for q in range(4):
            L.append([f"s_add_u32 m0, s{S_MA}, {1024*q}", "s_nop 0",
                      f"buffer_load_dwordx4 v{V_AOFF+q}, s[{S_WS}:{S_WS+3}], s{S_KA} offen lds"])
        for c in range(2):
            L.append([f"s_add_u32 m0, s{S_MW}, {OFF_W+4096*c}", "s_nop 0",
                      f"buffer_load_dwordx4 v{V_WOFF+c}, s[{S_WO}:{S_WO+3}], s{S_KW} offen lds"])
        return L

    def dma_advance():
        return [f"s_add_u32 s{S_KA}, s{S_KA}, 128",
                f"s_add_u32 s{S_KW}, s{S_KW}, {64*2048}",
                f"s_add_u32 s{S_WSLOT}, s{S_WSLOT}, {STAGE}",
                f"s_cmp_eq_u32 s{S_WSLOT}, {NSLOT*STAGE}",
                f"s_cselect_b32 s{S_WSLOT}, 0, s{S_WSLOT}",
                f"s_lshl_b32 s{S_T0}, s{S_WAVE}, 12",
                f"s_add_u32 s{S_MA}, s{S_WSLOT}, s{S_T0}",
                f"s_lshl_b32 s{S_T0}, s{S_WAVE}, 10",
                f"s_add_u32 s{S_MW}, s{S_WSLOT}, s{S_T0}"]

    for st in range(NSLOT - 1):
        for grp in dma_list():
            for s in grp:
                a(s)
        for s in dma_advance():
            a(s)
    a(f"s_lshr_b32 s{S_T0}, s{S_T2}, 5")
    a(f"s_lshl_b32 s{S_T0}, s{S_T0}, 5")
    a(f"s_lshl_b32 s{S_T1}, s{S_NT}, 1")
    a(f"s_add_u32 s{S_T0}, s{S_T0}, s{S_T1}")
    a(f"s_lshl_b32 s{S_T0}, s{S_T0}, 11")
    a(f"s_add_u32 s{S_T0}, s{S_T0}, {WS_Y}")
    a(f"s_add_u32 s{S_T1}, s{S_T0}, {64*32*2048}")
    for z in range(2):
        for ni in range(2):
            for f in range(2):
                r = Y + ((z * 2 + ni) * 2 + f) * 4
                a(f"buffer_load_dwordx4 v[{r}:{r+3}], v{V_L16}, s[{S_WS}:{S_WS+3}], s{S_T0 if z == 0 else S_T1} offen offset:{2048*ni+1024*f}")
    a(f"v_lshlrev_b32 v2, 2, v2")
    a(f"s_lshl_b32 s{S_T0}, s{S_T2}, 2")
    a(f"s_add_u32 s{S_T0}, s{S_T0}, {WS_G}")
    a(f"buffer_load_dword v{V_G}, v2, s[{S_WS}:{S_WS+3}], s{S_T0} offen")
    a(f"s_lshl_b32 s47, s{S_T2}, 11")
    a(f"s_lshl_b32 s{S_T0}, s{S_NT}, 7")
    a(f"s_add_u32 s47, s47, s{S_T0}")
    for r in range(32):
        a(f"v_mov_b32 v{ACC+r}, 0")

    def mfmas(p):
        L = []
        for ni in range(2):
            d = vr(acc(ni), 16)
            L.append(f"v_mfma_f32_32x32x16_bf16 {d}, {vr(frag(p,1+ni),4)}, {vr(frag(p,0),4)}, {d}")
        return L

    def reads(ks, p):
        L = [f"ds_read_b128 {vr(frag(p,0),4)}, v{V_AA+ks}"]
        for c in range(2):
            for pp in range(2):
                L.append(f"ds_read_b64_tr_b16 {vr(frag(p,1+c)+2*pp,2)}, v{V_WA} offset:{4096*c+1024*ks+256*pp}")
        return L

    def addr_advance():
        L = [f"s_mov_b32 s{S_RD}, s{S_RSLOT}",
             f"s_add_u32 s{S_RSLOT}, s{S_RSLOT}, {STAGE}",
             f"s_cmp_eq_u32 s{S_RSLOT}, {NSLOT*STAGE}",
             f"s_cselect_b32 s{S_RSLOT}, 0, s{S_RSLOT}",
             f"s_sub_u32 s{S_RD}, s{S_RSLOT}, s{S_RD}"]
        for r in list(range(V_AA, V_AA + 4)) + [V_WA]:
            L.append(f"v_add_u32 v{r}, s{S_RD}, v{r}")
        return L

    def phase(mf, fill):
        for i in range(max(len(mf), len(fill))):
            if i < len(mf):
                a(mf[i])
            if i < len(fill):
                for s in fill[i]:
                    a(s)

    def body(first, dma, vm):
        D = dma_list() if dma else [[] for _ in range(6)]
        if not first:
            for s in addr_advance():
                a(s)
        a(f"s_waitcnt vmcnt({vm})")
        a("s_barrier")
        r0 = reads(0, 0)
        if first:
            phase([], [r0, D[0], D[1]])
        else:
            phase(mfmas(1), [r0, D[0] + D[1]])
        a("s_waitcnt lgkmcnt(0)")
        phase(mfmas(0), [reads(1, 1), D[2] + D[3]])
        a("s_waitcnt lgkmcnt(0)")
        phase(mfmas(1), [reads(2, 0), D[4] + D[5]])
        a("s_waitcnt lgkmcnt(0)")
        phase(mfmas(0), [reads(3, 1), dma_advance() if dma else []])
        a("s_waitcnt lgkmcnt(0)")

    a(f"s_mov_b32 s{S_RSLOT}, 0")
    body(True, True, 6 * (NSLOT - 2) + 9)
    a(f"s_mov_b32 s{S_CNT}, {NIT - (NSLOT-1) - 1}")
    a.label("K4_LOOP")
    body(False, True, 6 * (NSLOT - 2))
    a(f"s_sub_u32 s{S_CNT}, s{S_CNT}, 1")
    a(f"s_cmp_lg_u32 s{S_CNT}, 0")
    a("s_cbranch_scc1 K4_LOOP")
    for r in range(NSLOT - 1):
        body(False, False, 6 * (NSLOT - 2 - r))
    phase(mfmas(1), [])
    for ni in range(2):
        d = acc(ni)
        for f in range(2):
            for r in range(4):
                y0 = Y + ((0 * 2 + ni) * 2 + f) * 4 + r
                y1 = Y + ((1 * 2 + ni) * 2 + f) * 4 + r
                t = T + ((ni * 2 + f) * 4 + r) * 2
                a(f"v_lshlrev_b32 v{t}, 16, v{y0}")
                a(f"v_and_b32 v{t+1}, 0xffff0000, v{y0}")
                a(f"v_lshlrev_b32 v{y0}, 16, v{y1}")
                a(f"v_and_b32 v{y1}, 0xffff0000, v{y1}")
                a(f"v_add_f32 v{t}, v{t}, v{y0}")
                a(f"v_add_f32 v{t+1}, v{t+1}, v{y1}")
    for ni in range(2):
        d = acc(ni)
        for i in range(16):
            a(f"v_fma_f32 v{d+i}, v{V_G}, v{T+ni*16+i}, v{d+i}")
        P = Y + ni * 8
        for r in range(8):
            a(f"v_cvt_pk_bf16_f32 v{P+r}, v{d+2*r}, v{d+2*r+1}")
        a("s_nop 1")
        for f in range(2):
            a(f"v_permlane32_swap_b32 v{P+4*f}, v{P+4*f+2}")
            a(f"v_permlane32_swap_b32 v{P+4*f+1}, v{P+4*f+3}")
        for f in range(2):
            a(f"buffer_store_dwordx4 v[{P+4*f}:{P+4*f+3}], v{V_ST}, s[{S_OUT}:{S_OUT+3}], s47 offen offset:{64*ni+32*f}")
    a("s_waitcnt vmcnt(0)")
    a.label("K4_END")
    a("s_endpgm")
    return dict(name=NAME, grid=256, block=256, lds=LDS_BYTES, nvgpr=160, accum=160)
```

```python
import sys, importlib
sys.path.insert(0, "gen")
from common import *
import k1, k2, k3, k4

HEADER = open("gated_mix__spectral_fnet__softmax_full_mha__prompt.s.ref").read().split("; Override launch")[0]

def build(mods, path):
    a = Asm()
    infos = []
    for m in mods:
        infos.append(m.gen(a))
    out = HEADER
    for inf in infos:
        out += f"; @launch kernel={inf['name']} grid=({inf['grid']},1,1) block=({inf['block']},1,1) lds={inf['lds']}\n"
    out += '.amdgcn_target "amdgcn-amd-amdhsa--gfx950"\n.text\n'
    out += a.text()
    out += '.section .rodata,"a"\n.p2align 6\n'
    for inf in infos:
        out += kernel_desc(inf['name'], inf['nvgpr'], inf['accum']) + ".p2align 6\n"
    open(path, "w").write(out)

if __name__ == "__main__":
    path = sys.argv[1] if len(sys.argv) > 1 else "gated_mix__spectral_fnet__softmax_full_mha__prompt.s"
    build([k1, k2, k3, k4], path)
```
